```python
import torch

def _softmax(x, axis=-1):
    return torch.softmax(x, dim=axis)
def _gelu(x):
    return torch.nn.functional.gelu(x, approximate="tanh")
def _silu(x):
    return torch.nn.functional.silu(x)
def _sigmoid(x):
    return torch.sigmoid(x)
def _layernorm(x, axis=-1, eps=1e-5):
    m = x.mean(dim=axis, keepdim=True)
    v = x.var(dim=axis, keepdim=True, unbiased=False)
    return (x - m) / torch.sqrt(v + eps)
def _scatter_add(tgt, idx, src, axis=0):
    return tgt.clone().index_add_(axis, idx, src)
def _segment_sum(src, seg, n):
    out = torch.zeros((n,) + src.shape[1:], dtype=src.dtype)
    return out.index_add_(0, seg, src)
def _pad(x, pw):
    flat = tuple(v for pair in reversed(pw) for v in pair)
    return torch.nn.functional.pad(x, flat)

kernel_name = 'recurrent_scan__softmax_full_mha__swiglu_ffn__prompt'

def setup_inputs():

    _w = (lambda a: (lambda t: t.to(torch.bfloat16) if t.is_floating_point() else t)(torch.as_tensor(a)))
    def _A_setup():
        B, S, D = 1, 2048, 640
        return {
            "x": _w((lambda *s: torch.randn(*s, dtype=torch.bfloat16) * 0.05)(B, S, D)),
            "wqkv": _w((lambda *s: torch.randn(*s, dtype=torch.bfloat16) * 0.05)(D, 3 * D)),
            "wo": _w((lambda *s: torch.randn(*s, dtype=torch.bfloat16) * 0.05)(D, D)),
        }
    _A_in = _A_setup()

    def _B_setup():
        B, S, D, F = 1, 2048, 640, 1536
        return {
            "x": _w((lambda *s: torch.randn(*s, dtype=torch.bfloat16) * 0.05)(B, S, D)),
            "w_gate": _w((lambda *s: torch.randn(*s, dtype=torch.bfloat16) * 0.05)(D, F)),
            "w_up": _w((lambda *s: torch.randn(*s, dtype=torch.bfloat16) * 0.05)(D, F)),
            "w_down": _w((lambda *s: torch.randn(*s, dtype=torch.bfloat16) * 0.05)(F, D)),
        }
    _B_in = _B_setup()

    return {
        "A_x": _A_in["x"],
        "A_wqkv": _A_in["wqkv"],
        "A_wo": _A_in["wo"],
        "B_x": _B_in["x"],
        "B_w_gate": _B_in["w_gate"],
        "B_w_up": _B_in["w_up"],
        "B_w_down": _B_in["w_down"],
    }

def reference(A_x, A_wqkv, A_wo, B_x, B_w_gate, B_w_up, B_w_down):
    def _A_ref(x, wqkv, wo):
        B, S, D = x.shape
        H = 32; Dh = D // H
        qkv = (lambda x, *d: x.permute(*d))((x @ wqkv).reshape(B, S, 3, H, Dh), 2, 0, 3, 1, 4)
        q, k, v = qkv[0], qkv[1], qkv[2]
        scale = Dh ** -0.5
        scores = torch.einsum("bhqd,bhkd->bhqk", q, k) * scale
        p = _softmax(scores, axis=-1)
        o = torch.einsum("bhqk,bhkd->bhqd", p, v)
        return (lambda x, *d: x.permute(*d))(o, 0, 2, 1, 3).reshape(B, S, D) @ wo

    def _B_ref(x, w_gate, w_up, w_down):
        g = _silu(x @ w_gate)
        u = x @ w_up
        return (g * u) @ w_down

    x = A_x
    xn = _layernorm(x, axis=-1)
    s = _A_ref(xn, A_wqkv, A_wo)
    g = _silu(_B_ref(xn, B_w_gate, B_w_up, B_w_down))
    return x + s * g
```

```python
import re, struct

def v(a, n=1):
    return f"v{a}" if n == 1 else f"v[{a}:{a+n-1}]"
def s(a, n=1):
    return f"s{a}" if n == 1 else f"s[{a}:{a+n-1}]"
def f32(x):
    return "0x%08x" % struct.unpack("<I", struct.pack("<f", x))[0]

class Asm:
    def __init__(self):
        self.L = []
    def __call__(self, *lines):
        for x in lines:
            if isinstance(x, (list, tuple)):
                self(*x)
            else:
                for y in x.split("\n"):
                    y = y.strip()
                    if y:
                        self.L.append(y if y.endswith(":") or y.startswith(".") or y.startswith(";") else "    " + y)
    def text(self):
        return "\n".join(self.L) + "\n"

def weave(primary, fillers):
    out = []
    for p, f in zip(primary, fillers):
        out.append(p)
        out.extend(f)
    return out

def spread(items, nbins, caps=None):
    out = [[] for _ in range(nbins)]
    if caps is None:
        for b in range(nbins):
            out[b] = items[b * len(items) // nbins:(b + 1) * len(items) // nbins]
        return out
    i = 0
    for b in range(nbins):
        out[b] = items[i:i + caps[b]]
        i += caps[b]
    assert i >= len(items), (i, len(items))
    return out

_REG = re.compile(r"\b([vas])(\d+)\b|\b([vas])\[(\d+):(\d+)\]")
def regs(tok):
    out = set()
    for m in _REG.finditer(tok):
        if m.group(1):
            out.add((m.group(1), int(m.group(2))))
        else:
            for r in range(int(m.group(4)), int(m.group(5)) + 1):
                out.add((m.group(3), r))
    if "vcc" in tok:
        out.add(("s", 106))
    if re.search(r"\bexec\b", tok):
        out.add(("s", 126))
    if re.search(r"\bm0\b", tok):
        out.add(("s", 124))
    return out

TRANS = ("v_exp_", "v_log_", "v_rcp_", "v_rsq_", "v_sqrt_", "v_sin_", "v_cos_")
class I:
    def __init__(self, line):
        self.line = line.strip()
        body = self.line.split(";")[0].strip()
        parts = body.split(None, 1)
        self.op = parts[0]
        ops = [x.strip() for x in parts[1].split(",")] if len(parts) > 1 else []
        self.ops = ops
        op = self.op
        self.mfma = op.startswith("v_mfma")
        self.valu = op.startswith("v_") and not self.mfma
        self.trans = op.startswith(TRANS)
        self.dot = op.startswith("v_dot")
        self.dpp = "_dpp" in op or "quad_perm" in body or "row_" in body
        self.vmem = op.startswith(("buffer_", "global_", "flat_"))
        self.ds = op.startswith("ds_")
        self.salu = op.startswith("s_")
        self.lds_dma = self.vmem and (re.search(r"\blds\b", body) is not None or "_lds_" in op)
        self.w, self.r = set(), set()
        self.srcC = set()
        self.states = 1
        if op == "s_nop":
            self.states = int(ops[0], 0) + 1
        if self.mfma:
            self.w = regs(ops[0]); self.ab = regs(ops[1]) | regs(ops[2]); self.srcC = regs(ops[3])
            self.r = self.ab | self.srcC
            self.passes = 8 if "32x32" in op else (4 if "16x16" in op else 2)
        elif self.valu:
            if op.startswith("v_permlane"):
                self.w = regs(ops[0]) | regs(ops[1]); self.r = set(self.w)
            elif op.startswith("v_cmp"):
                self.w = regs(ops[0]); self.r = set().union(*[regs(x) for x in ops[1:]])
                if op.startswith("v_cmpx"):
                    self.w.add(("s", 126))
            elif "_co_" in op:
                self.w = regs(ops[0]) | regs(ops[1]); self.r = set().union(*[regs(x) for x in ops[2:]])
            elif op == "v_nop":
                pass
            else:
                self.w = regs(ops[0]); self.r = set().union(*[regs(x) for x in ops[1:]]) if len(ops) > 1 else set()
                if op.startswith(("v_fmac", "v_dot2c", "v_pk_fmac")) or "UNUSED_PRESERVE" in body or self.dpp:
                    self.r |= self.w
        elif self.vmem:
            allr = [regs(x) for x in ops]
            if op.startswith(("buffer_inv", "buffer_wbl2")):
                pass
            elif "load" in op and not self.lds_dma:
                self.w = allr[0]; self.r = set().union(*allr[1:])
            else:
                self.r = set().union(*allr)
                self.data = allr[0] if op.startswith("buffer_") else allr[1]
                if self.lds_dma:
                    self.r.add(("s", 124))
        elif self.ds:
            allr = [regs(x) for x in ops]
            if "read" in op or "permute" in op or "swizzle" in op or "_rtn" in op:
                self.w = allr[0]; self.r = set().union(*allr[1:])
            else:
                self.r = set().union(*allr)
        elif self.salu and ops:
            if op.startswith(("s_cmp", "s_cbranch", "s_branch", "s_waitcnt", "s_nop", "s_sleep", "s_setprio", "s_barrier")):
                self.r = set().union(*[regs(x) for x in ops])
            else:
                self.w = regs(ops[0]); self.r = set().union(*[regs(x) for x in ops[1:]]) if len(ops) > 1 else set()
                if "saveexec" in op:
                    self.w.add(("s", 126))

def need(p, c):
    n = 0
    vw = {x for x in p.w if x[0] != "s"}
    sw = {x for x in p.w if x[0] == "s"}
    if p.valu:
        if c.mfma and vw & c.r: n = max(n, 3 if p.dot else 2)
        if c.valu and c.dpp and vw & c.r: n = max(n, 2)
        if c.op.startswith("v_permlane") and vw & c.r: n = max(n, 2)
        if c.op.startswith(("v_readlane", "v_readfirstlane")) and vw & c.r: n = max(n, 1)
        if p.trans and (c.valu and not c.trans or c.mfma) and vw & c.r: n = max(n, 1)
        if p.trans and (c.vmem or c.ds) and vw & c.r: n = max(n, 1)
        if p.dot and vw & (c.r | c.w):
            same_acc = c.op == p.op and not (vw & set().union(*[regs(x) for x in c.ops[1:3]]))
            if not same_acc: n = max(n, 3)
        if sw:
            if c.vmem and sw & c.r: n = max(n, 5)
            if c.valu and sw & c.r: n = max(n, 4 if c.op.startswith(("v_readlane", "v_writelane")) else 2)
            if ("s", 126) in sw and (c.mfma or c.op.startswith(("v_permlane", "v_readlane", "v_readfirstlane"))): n = max(n, 4)
            if ("s", 126) in sw and c.dpp: n = max(n, 5)
        if ("sdwa" in p.op or "op_sel" in p.line) and c.valu and vw & (c.r | c.w): n = max(n, 1)
    if p.mfma:
        tbl = {2: (2, 4, 5, 1), 4: (0, 6, 8, 3), 8: (0, 10, 12, 7)}[p.passes]
        if c.mfma:
            if p.w & c.srcC:
                n = max(n, tbl[0] if (p.w == c.srcC and p.passes == c.passes) else tbl[1])
            if p.w & c.ab: n = max(n, tbl[2])
            if p.w & c.w and not (p.w & c.srcC): n = max(n, 0)
        elif (c.valu or c.vmem or c.ds) and p.w & (c.r | c.w):
            n = max(n, tbl[2])
        if c.valu and p.srcC & c.w: n = max(n, tbl[3])
    if p.vmem and ("store" in p.op) and ("x3" in p.op or "x4" in p.op):
        if p.data & c.w: n = max(n, 2 if c.valu else 1)
    if p.salu and ("s", 124) in p.w and c.lds_dma: n = max(n, 1)
    return n

def lint(text, maxdist=24):
    ins, labels = [], {}
    for ln in text.split("\n"):
        t = ln.split(";")[0].strip()
        if not t or t.startswith("."):
            continue
        if t.endswith(":"):
            labels[t[:-1]] = len(ins)
            continue
        ins.append(I(t))
    def succ(i):
        x = ins[i]
        if x.op == "s_endpgm": return []
        if x.op == "s_branch": return [labels[x.ops[0]]]
        out = [i + 1] if i + 1 < len(ins) else []
        if x.op.startswith("s_cbranch"): out.append(labels[x.ops[0]])
        return out
    bad = []
    for i, p in enumerate(ins):
        if not (p.valu or p.mfma or p.vmem or p.salu): continue
        lim = 13 if p.mfma else 6
        stack = [(j, 0) for j in succ(i)]
        seen = {}
        while stack:
            j, d = stack.pop()
            if j >= len(ins) or seen.get(j, 99) <= d: continue
            seen[j] = d
            c = ins[j]
            n = need(p, c)
            if n > d:
                bad.append((i, j, n, d, p.line, c.line))
            nd = d + c.states
            if nd < lim:
                stack += [(k, nd) for k in succ(j)]
    for b in bad:
        print(f"HAZARD need {b[2]} have {b[3]}:\n   [{b[0]}] {b[4]}\n   [{b[1]}] {b[5]}")
    return len(bad)
```

```python
from asmlib import *
import math

NAME = "recurrent_scan__softmax_full_mha__swiglu_ffn__prompt"
S_, D_, F_, H_, DH = 2048, 640, 1536, 32, 20
LOG2E = math.log2(math.e)
QSCALE = DH ** -0.5 * LOG2E

QKF = 0
VROW = 648 * 16
VF = QKF + 80 * 64 * 1024
HF = VF + 256 * VROW
OF = HF + 64 * 96 * 1024
WS_USED = OF + 64 * 40 * 1024

KA_X, KA_WQKV, KA_WO, KA_WG, KA_WU, KA_WD, KA_OUT, KA_DBG, KA_WS = 0, 8, 16, 32, 40, 48, 56, 64, 72

def srd(a, dst, ptr, nbytes):
    a(f"s_mov_b32 s{dst}, s{ptr}", f"s_mov_b32 s{dst+1}, s{ptr+1}",
      f"s_mov_b32 s{dst+2}, {nbytes}", f"s_mov_b32 s{dst+3}, 0x00020000")

def kernel_head(a, name):
    a(f".globl {name}", ".p2align 8", f".type {name},@function", f"{name}:")

def kernel_desc(name, nv=256):
    return f""".p2align 6
.amdhsa_kernel {name}
  .amdhsa_next_free_vgpr {nv}
  .amdhsa_next_free_sgpr 102
  .amdhsa_accum_offset {min(256, (nv + 3) // 4 * 4)}
  .amdhsa_group_segment_fixed_size 0
  .amdhsa_kernarg_size 80
  .amdhsa_user_sgpr_count 2
  .amdhsa_user_sgpr_kernarg_segment_ptr 1
  .amdhsa_system_sgpr_workgroup_id_x 1
.end_amdhsa_kernel
"""

class LdsQueue:
    def __init__(self):
        self.issued = 0
        self.done = 0
        self.pos = {}
    def issue(self, key):
        self.issued += 1
        self.pos[key] = self.issued
    def wait(self, keys):
        need = max(self.pos[k] for k in keys)
        if need <= self.done:
            return []
        n = min(15, self.issued - need)
        self.done = self.issued - n
        return [f"s_waitcnt lgkmcnt({n})"]
    def wait_all(self):
        if self.done == self.issued:
            return []
        self.done = self.issued
        return ["s_waitcnt lgkmcnt(0)"]

class VmQueue(LdsQueue):
    def wait(self, keys):
        need = max(self.pos[k] for k in keys)
        if need <= self.done:
            return []
        n = min(63, self.issued - need)
        self.done = self.issued - n
        return [f"s_waitcnt vmcnt({n})"]

class Prof:
    on = False
    BASE = 60
    OFF = 32 << 20
def stamp(a, i):
    if Prof.on:
        a(f"s_memrealtime s[{Prof.BASE + 2*i}:{Prof.BASE + 2*i + 1}]")
def stamp_init(a):
    if Prof.on:
        for r in range(Prof.BASE + 2, 100):
            a(f"s_mov_b32 s{r}, 0")
        a("s_memtime s[96:97]")
def endpgm(a, kidx, wsptr=44, wave=3):
    if Prof.on:
        a("s_mov_b64 exec, -1", "s_waitcnt vmcnt(0)", "s_memrealtime s[94:95]", "s_memtime s[98:99]", "s_waitcnt lgkmcnt(0)",
          "s_sub_u32 s96, s98, s96", "s_getreg_b32 s98, hwreg(HW_REG_XCC_ID)")
        for i in range(20):
            a(f"v_mov_b32 v{16+i}, s{Prof.BASE + 2*i}")
        a("s_lshl_b32 s4, s2, 3", f"s_add_u32 s4, s4, s{wave}", "s_lshl_b32 s4, s4, 7", f"s_add_u32 s4, s4, {Prof.OFF + (kidx << 20)}",
          "v_mov_b32 v1, 0", f"s_mov_b32 s8, s{wsptr}", f"s_mov_b32 s9, s{wsptr+1}", "s_mov_b32 s10, 0x4000000", "s_mov_b32 s11, 0x00020000",
          "s_mov_b64 exec, 1")
        for i in range(5):
            a(f"buffer_store_dwordx4 v[{16+4*i}:{19+4*i}], v1, s[8:11], s4 offen offset:{16*i}")
    a("s_endpgm")
```

```python
import os, sys, subprocess, struct, ctypes
import numpy as np
sys.path.insert(0, "cdna_kernels")
import cdna_launch as cl

CLANG = "clang"

def assemble(asm, name, nptrs, path):
    txt = cl.with_harness_metadata(asm, name, nptrs, launch_lists=True)
    s = path + ".harness.s"
    co = path + ".co"
    open(s, "w").write(txt)
    r = subprocess.run([CLANG, "-x", "assembler", "-target", "amdgcn-amd-amdhsa", "-mcpu=gfx950", s, "-o", co],
                       capture_output=True, text=True)
    if r.returncode != 0:
        print(r.stderr)
        raise SystemExit("assembly failed")
    return co

def loop_kernel(body, iters, block, nvgpr=256, accum=None, init="", lds=0, roles=None):
    if accum is None:
        accum = min(256, (nvgpr + 3) // 4 * 4)
    bodies = roles if roles else [body]
    code = []
    code.append(f"; @launch grid=(256,1,1) block=({block},1,1) lds={lds}")
    code.append('.amdgcn_target "amdgcn-amd-amdhsa--gfx950"')
    code.append(".text\n.globl mb_kernel\n.p2align 8\n.type mb_kernel,@function\nmb_kernel:")
    code.append("""
    s_load_dwordx2 s[4:5], s[0:1], 0
    s_load_dwordx2 s[6:7], s[0:1], 8
    v_lshrrev_b32 v1, 6, v0
    s_nop 1
    v_readfirstlane_b32 s20, v1
    s_waitcnt lgkmcnt(0)
    s_mov_b32 s8, s4
    s_mov_b32 s9, s5
    s_mov_b32 s10, 0x100000
    s_mov_b32 s11, 0x00020000
    s_mov_b32 s12, s6
    s_mov_b32 s13, s7
    s_mov_b32 s14, 0x4000000
    s_mov_b32 s15, 0x00020000
""")
    for r in range(2, min(nvgpr, accum)):
        code.append(f"    v_mov_b32 v{r}, 0")
    code.append(init)
    code.append("    s_lshr_b32 s21, s20, 2")
    code.append("    s_barrier")
    for i, b in enumerate(bodies):
        if len(bodies) > 1:
            code.append(f"    s_cmp_lg_u32 s21, {i}\n    s_cbranch_scc1 L_skip{i}")
        code.append(f"""
    s_mov_b32 s22, {iters}
    s_memtime s[24:25]
    s_waitcnt lgkmcnt(0)
.p2align 6
L_loop{i}:
{b}
    s_sub_u32 s22, s22, 1
    s_cmp_lg_u32 s22, 0
    s_cbranch_scc1 L_loop{i}
    s_memtime s[26:27]
    s_waitcnt lgkmcnt(0)
    s_branch L_done
L_skip{i}:
""")
    code.append(f"""
L_done:
    s_sub_u32 s28, s26, s24
    s_lshl_b32 s29, s2, 4
    s_add_u32 s29, s29, s20
    s_lshl_b32 s29, s29, 2
    v_mov_b32 v1, s28
    v_mov_b32 v0, s29
    s_nop 4
    buffer_store_dword v1, v0, s[8:11], 0 offen
    s_waitcnt vmcnt(0)
    s_endpgm
.section .rodata,"a"
.p2align 6
.amdhsa_kernel mb_kernel
  .amdhsa_next_free_vgpr {nvgpr}
  .amdhsa_next_free_sgpr 102
  .amdhsa_accum_offset {accum}
  .amdhsa_group_segment_fixed_size 0
  .amdhsa_kernarg_size 16
  .amdhsa_user_sgpr_count 2
  .amdhsa_user_sgpr_kernarg_segment_ptr 1
  .amdhsa_system_sgpr_workgroup_id_x 1
.end_amdhsa_kernel
""")
    return "\n".join(code)

_bufs = {}
PRE = [None]
def run(asm, tag, block, iters, grid=256, lds=0, reps=3):
    co = assemble(asm, "mb_kernel", 2, f"mb_{tag}")
    k = cl.AsmKernel(co, "mb_kernel")
    if "out" not in _bufs:
        _bufs["out"] = cl.DeviceBuffer(1 << 20)
        _bufs["data"] = cl.DeviceBuffer.from_numpy(np.zeros(1 << 24, dtype=np.float32))
    out, data = _bufs["out"], _bufs["data"]
    ka = cl.pack_ptr_kernargs([out.ptr, data.ptr])
    res = None
    for _ in range(reps):
        cl._check(cl._hip.hipMemset(out.ptr, 0, 1 << 20))
        if PRE[0]: PRE[0]()
        k.launch((grid, 1, 1), (block, 1, 1), ka, lds)
        cl._check(cl._hip.hipDeviceSynchronize())
        res = out.to_numpy(np.uint32, (1 << 18,))[: grid * 16].reshape(grid, 16)[:, : block // 64]
    k.unload()
    per = res.astype(np.float64) / iters
    nw = block // 64
    groups = [per[:, g * 4:(g + 1) * 4] for g in range((nw + 3) // 4)]
    s = " | ".join(f"med {np.median(g):8.1f} min {g.min():8.1f} max {g.max():8.1f}" for g in groups)
    print(f"{tag:40s} block={block:4d}: {s}", flush=True)
    return per
```
